```python
import torch

def _softmax(x, axis=-1):
    return torch.softmax(x, dim=axis)
def _gelu(x):
    return torch.nn.functional.gelu(x, approximate="tanh")
def _silu(x):
    return torch.nn.functional.silu(x)
def _sigmoid(x):
    return torch.sigmoid(x)
def _layernorm(x, axis=-1, eps=1e-5):
    m = x.mean(dim=axis, keepdim=True)
    v = x.var(dim=axis, keepdim=True, unbiased=False)
    return (x - m) / torch.sqrt(v + eps)
def _scatter_add(tgt, idx, src, axis=0):
    return tgt.clone().index_add_(axis, idx, src)
def _segment_sum(src, seg, n):
    out = torch.zeros((n,) + src.shape[1:], dtype=src.dtype)
    return out.index_add_(0, seg, src)
def _pad(x, pw):
    flat = tuple(v for pair in reversed(pw) for v in pair)
    return torch.nn.functional.pad(x, flat)

kernel_name = 'parallel_sum__grouped_kv_mqa__dense_activation_gelu__prompt'

def setup_inputs():

    _w = (lambda a: (lambda t: t.to(torch.bfloat16) if t.is_floating_point() else t)(torch.as_tensor(a)))
    def _A_setup():
        B, S, D, H = 1, 2048, 512, 32
        Dh = D // H
        return {
            "x": _w((lambda *s: torch.randn(*s, dtype=torch.bfloat16) * 0.05)(B, S, D)),
            "wq": _w((lambda *s: torch.randn(*s, dtype=torch.bfloat16) * 0.05)(D, H * Dh)),
            "wk": _w((lambda *s: torch.randn(*s, dtype=torch.bfloat16) * 0.05)(D, Dh)),
            "wv": _w((lambda *s: torch.randn(*s, dtype=torch.bfloat16) * 0.05)(D, Dh)),
            "wo": _w((lambda *s: torch.randn(*s, dtype=torch.bfloat16) * 0.05)(H * Dh, D)),
        }
    _A_in = _A_setup()

    def _B_setup():
        B, S, D, F = 1, 2048, 512, 1376
        return {
            "x": _w((lambda *s: torch.randn(*s, dtype=torch.bfloat16) * 0.05)(B, S, D)),
            "w1": _w((lambda *s: torch.randn(*s, dtype=torch.bfloat16) * 0.8)(D, F) * (D ** -0.5)),
            "b1": _w((lambda *s: torch.randn(*s, dtype=torch.bfloat16) * 12.8)(F) * 0.01),
            "w2": _w((lambda *s: torch.randn(*s, dtype=torch.bfloat16) * 0.8)(F, D) * (F ** -0.5)),
            "b2": _w((lambda *s: torch.randn(*s, dtype=torch.bfloat16) * 12.8)(D) * 0.01),
        }
    _B_in = _B_setup()

    return {
        "A_x": _A_in["x"],
        "A_wq": _A_in["wq"],
        "A_wk": _A_in["wk"],
        "A_wv": _A_in["wv"],
        "A_wo": _A_in["wo"],
        "B_x": _B_in["x"],
        "B_w1": _B_in["w1"],
        "B_b1": _B_in["b1"],
        "B_w2": _B_in["w2"],
        "B_b2": _B_in["b2"],
    }

def reference(A_x, A_wq, A_wk, A_wv, A_wo, B_x, B_w1, B_b1, B_w2, B_b2):
    def _A_ref(x, wq, wk, wv, wo):
        B, S, D = x.shape
        H = 32
        Dh = D // H
        q = (lambda x, *d: x.permute(*d))((x @ wq).reshape(B, S, H, Dh), 0, 2, 1, 3)
        k = x @ wk
        v = x @ wv
        scores = torch.einsum("bhqd,bkd->bhqk", q, k) * (Dh ** -0.5)
        p = _softmax(scores, axis=-1)
        o = torch.einsum("bhqk,bkd->bhqd", p, v)
        return (lambda x, *d: x.permute(*d))(o, 0, 2, 1, 3).reshape(B, S, H * Dh) @ wo

    def _B_ref(x, w1, b1, w2, b2):
        h = torch.einsum("bsd,df->bsf", x, w1) + b1
        h = _gelu(h)
        return torch.einsum("bsf,fd->bsd", h, w2) + b2

    x = A_x
    xn = _layernorm(x, axis=-1)
    return x + _A_ref(xn, A_wq, A_wk, A_wv, A_wo) + _B_ref(xn, B_w1, B_b1, B_w2, B_b2)
```

```python
class Asm:
    def __init__(self):
        self.lines = []
    def __call__(self, s=""):
        for l in s.strip("\n").split("\n"):
            self.lines.append("    " + l.strip())
    def label(self, l):
        self.lines.append(l + ":")
    def raw(self, s):
        self.lines.append(s)
    def text(self):
        return "\n".join(self.lines) + "\n"

def vr(b, n):
    return f"v[{b}:{b+n-1}]"
def sr(b, n):
    return f"s[{b}:{b+n-1}]"

Q_OFF   = 0
O_OFF   = 2 << 20
H_OFF   = 4 << 20
H_SIZE  = 64 * 86 * 1024
KV_OFF  = 10 << 20
KV_REC  = 2064
KV_SIZE = 64 * KV_REC
KN_OFF  = KV_OFF + (256 << 10)
WS_USED = 12 << 20

def kdesc(name, vgpr, sgpr=102, accum=None):
    if accum is None:
        accum = (vgpr + 3) // 4 * 4
    return f""".section .rodata,"a"
.p2align 6
.amdhsa_kernel {name}
  .amdhsa_next_free_vgpr {vgpr}
  .amdhsa_next_free_sgpr {sgpr}
  .amdhsa_accum_offset {accum}
  .amdhsa_group_segment_fixed_size 0
  .amdhsa_kernarg_size 104
  .amdhsa_user_sgpr_count 2
  .amdhsa_user_sgpr_kernarg_segment_ptr 1
  .amdhsa_system_sgpr_workgroup_id_x 1
.end_amdhsa_kernel
"""

def khead(name):
    return f""".text
.globl {name}
.p2align 8
.type {name},@function
{name}:
"""

def srd(a, d, base_lo, nrec):
    a(f"s_mov_b32 s{d}, s{base_lo}")
    a(f"s_mov_b32 s{d+1}, s{base_lo+1}")
    a(f"s_mov_b32 s{d+2}, {nrec}")
    a(f"s_mov_b32 s{d+3}, 0x00020000")
```

```python
from common import *

LOG2E = 1.4426950408889634
K0 = -2.0 * LOG2E * 0.7978845608028654
K1C = K0 * 0.044715
QS = 0.25 * LOG2E

import struct
def f2u(x):
    return "0x%08x" % struct.unpack("<I", struct.pack("<f", x))[0]

class LG:
    def __init__(self, a, init=()):
        self.a = a
        self.q = list(init)
    def issue(self, tag, ins):
        self.a(ins)
        self.q.append(tag)
    def need(self, *tags):
        idx = -1
        for t in tags:
            if t in self.q:
                idx = max(idx, len(self.q) - 1 - self.q[::-1].index(t))
        if idx >= 0:
            n = len(self.q) - 1 - idx
            self.a(f"s_waitcnt lgkmcnt({n})")
            self.q = self.q[idx + 1:]
    def drain(self):
        if self.q:
            self.a("s_waitcnt lgkmcnt(0)")
        self.q = []

def bf16_round_f32(a, dst, src):
    a(f"v_cvt_pk_bf16_f32 v{dst}, v{src}, v{src}")
    a(f"v_and_b32 v{dst}, 0xffff0000, v{dst}")

def row_stats(a, vsum, vsq, vm, vs, t0, t1):
    a(f"v_mov_b32 v{t0}, v{vsum}")
    a(f"v_mov_b32 v{t1}, v{vsq}")
    a("s_nop 1")
    a(f"v_permlane32_swap_b32 v{vsum}, v{t0}")
    a(f"v_permlane32_swap_b32 v{vsq}, v{t1}")
    a("s_nop 1")
    a(f"v_add_f32 v{vsum}, v{vsum}, v{t0}")
    a(f"v_add_f32 v{vsq}, v{vsq}, v{t1}")
    a(f"v_mul_f32 v{vm}, {f2u(1/512.)}, v{vsum}")
    a(f"v_mul_f32 v{t0}, v{vm}, v{vm}")
    a(f"v_mul_f32 v{t1}, {f2u(1/512.)}, v{vsq}")
    a(f"v_sub_f32 v{t1}, v{t1}, v{t0}")
    a(f"v_max_f32 v{t1}, 0, v{t1}")
    bf16_round_f32(a, vm, vm)
    bf16_round_f32(a, t1, t1)
    a(f"v_add_f32 v{t1}, {f2u(1e-5)}, v{t1}")
    bf16_round_f32(a, t1, t1)
    a(f"v_sqrt_f32 v{vs}, v{t1}")
    a("s_nop 0")
    bf16_round_f32(a, vs, vs)

def colsum_split(a, vcs, vb, r0, r1, t0, t1):
    a(f"v_mov_b32 v{t0}, v{vcs}")
    a("s_nop 1")
    a(f"v_permlane32_swap_b32 v{vcs}, v{t0}")
    a("s_nop 1")
    a(f"v_add_f32 v{vcs}, v{vcs}, v{t0}")
    bf16_round_f32(a, t0, vcs)
    a(f"v_sub_f32 v{vcs}, v{vcs}, v{t0}")
    bf16_round_f32(a, t1, vcs)
    a(f"v_sub_f32 v{vcs}, v{vcs}, v{t1}")
    a(f"v_cvt_pk_bf16_f32 v{r0}, v{t0}, v{t1}")
    a(f"v_cvt_pk_bf16_f32 v{r1}, v{vcs}, v{vcs}")
    a(f"v_and_b32 v{r1}, 0xffff, v{r1}")
    if vb is not None:
        a(f"v_lshl_or_b32 v{r1}, v{vb}, 16, v{r1}")

def xside_frag(a, vm, vs, f, t0, with_s):
    a(f"v_sub_f32 v{t0}, 0, v{vm}")
    a(f"v_cvt_pk_bf16_f32 v{f}, v{t0}, v{t0}")
    if with_s:
        a(f"v_cvt_pk_bf16_f32 v{f+1}, v{t0}, v{vs}")
    else:
        a(f"v_and_b32 v{f+1}, 0xffff, v{f}")
    a(f"v_cndmask_b32 v{f}, 0, v{f}, s[56:57]")
    a(f"v_cndmask_b32 v{f+1}, 0, v{f+1}, s[56:57]")
    a(f"v_mov_b32 v{f+2}, 0")
    a(f"v_mov_b32 v{f+3}, 0")

def gen_k1():
    a = Asm()
    name = "k1_kernel"
    a.raw(khead(name))
    a("""
    s_cmp_ge_u32 s2, 256
    s_cbranch_scc1 K1_END
    s_load_dwordx4 s[4:7], s[0:1], 0
    s_load_dwordx4 s[8:11], s[0:1], 16
    s_load_dwordx4 s[12:15], s[0:1], 48
    s_load_dwordx2 s[16:17], s[0:1], 96
    s_and_b32 s18, s2, 7
    s_lshr_b32 s19, s2, 3
    s_lshr_b32 s20, s18, 1
    s_lshl_b32 s20, s20, 2
    s_and_b32 s21, s19, 3
    s_add_u32 s20, s20, s21
    s_and_b32 s21, s18, 1
    s_lshl_b32 s21, s21, 3
    s_lshr_b32 s22, s19, 2
    s_add_u32 s21, s21, s22
    v_lshrrev_b32 v1, 6, v0
    v_and_b32 v2, 63, v0
    v_readfirstlane_b32 s23, v1
    v_lshrrev_b32 v20, 3, v2
    v_lshlrev_b32 v20, 10, v20
    v_lshrrev_b32 v21, 4, v2
    v_and_b32 v22, 7, v2
    v_xor_b32 v22, v22, v21
    v_lshl_add_u32 v3, v22, 4, v20
    v_xor_b32 v4, 64, v3
    s_lshr_b32 s44, s23, 1
    s_and_b32 s45, s23, 1
    s_mov_b32 s56, -1
    s_mov_b32 s57, 0
    v_mov_b32 v19, 0x3f803f80
    v_mov_b32 v16, 0
    v_mov_b32 v17, 0
    v_mov_b32 v18, 0
    """)
    a("""
    s_lshl_b32 s48, s20, 17
    s_lshl_b32 s18, s23, 15
    s_add_u32 s48, s48, s18
    s_lshl_b32 s50, s23, 12
    s_waitcnt lgkmcnt(0)
    """)
    srd(a, 24, 4, 2048 * 1024)
    srd(a, 32, 16, WS_USED)
    srd(a, 36, 14, 2752)
    a("s_cmp_eq_u32 s21, 15")
    a("s_cbranch_scc1 K1_KV")
    a("""
    s_mov_b32 s30, 1409024
    s_movk_i32 s46, 2752
    s_cmp_lt_u32 s21, 4
    s_cselect_b32 s28, s6, s12
    s_cselect_b32 s29, s7, s13
    s_cselect_b32 s30, 524288, s30
    s_mov_b32 s31, 0x00020000
    s_cselect_b32 s46, 1024, s46
    s_cselect_b32 s18, 0, 4
    s_sub_u32 s58, s21, s18
    s_lshl_b32 s47, s58, 8
    s_lshl_b32 s52, s46, 6
    s_lshl_b32 s51, s46, 2
    s_sub_u32 s51, s51, 1024
    s_lshl_b32 s18, s46, 4
    s_mul_i32 s49, s18, s23
    s_add_u32 s49, s49, s47
    v_mul_lo_u32 v5, v21, s46
    v_and_b32 v22, 15, v2
    v_lshlrev_b32 v23, 2, v21
    v_xor_b32 v22, v22, v23
    v_lshl_add_u32 v5, v22, 4, v5
    s_mov_b32 s53, 0
    """)
    def dma_block():
        a("s_mov_b32 m0, s50")
        a("s_mov_b32 s55, s48")
        for q in range(4):
            a(f"buffer_load_dwordx4 v{3 + (q & 1)}, s[24:27], s55 offen offset:{q*1024} lds")
            if q < 3:
                a("s_add_u32 s55, s55, 7168")
        a("s_add_u32 m0, s50, 16384")
        a("s_mov_b32 s55, s49")
        for q in range(4):
            a(f"buffer_load_dwordx4 v5, s[28:31], s55 offen offset:{q*1024} lds")
            if q < 3:
                a("s_add_u32 s55, s55, s51")
        a("s_add_u32 s48, s48, 128")
        a("s_add_u32 s49, s49, s52")
        a("s_add_u32 s50, s50, 32768")
    a.label("K1_PRE")
    dma_block()
    a("s_add_u32 s53, s53, 1")
    a("s_cmp_lt_u32 s53, 5")
    a("s_cbranch_scc1 K1_PRE")
    a("s_lshl_b32 s50, s23, 12")
    a("""
    v_and_b32 v20, 31, v2
    s_lshl_b32 s18, s45, 7
    s_lshl_b32 s19, s44, 6
    s_add_u32 s18, s18, s19
    s_add_u32 s18, s18, s47
    s_cmp_lt_u32 s21, 4
    s_cselect_b32 s18, 0x100000, s18
    v_lshlrev_b32 v56, 1, v20
    buffer_load_ushort v57, v56, s[36:39], s18 offen
    """)
    a("""
    v_lshrrev_b32 v21, 5, v2
    v_bfe_u32 v22, v2, 1, 3
    v_xor_b32 v22, v22, v21
    v_lshlrev_b32 v22, 4, v22
    v_lshl_add_u32 v22, v20, 7, v22
    s_lshl_b32 s18, s44, 13
    s_lshl_b32 s19, s45, 12
    s_add_u32 s18, s18, s19
    v_add_u32 v6, s18, v22
    v_xor_b32 v7, 32, v6
    v_xor_b32 v8, 64, v6
    v_xor_b32 v9, 96, v6
    v_xor_b32 v10, 0x1000, v6
    v_xor_b32 v11, 0x1000, v7
    v_xor_b32 v12, 0x1000, v8
    v_xor_b32 v13, 0x1000, v9
    """)
    a("""
    v_bfe_u32 v22, v2, 2, 2
    v_lshl_add_u32 v23, v21, 3, v22
    v_lshlrev_b32 v23, 8, v23
    v_bfe_u32 v58, v2, 4, 1
    v_bfe_u32 v59, v2, 1, 1
    v_lshl_add_u32 v58, v58, 1, v59
    s_lshl_b32 s18, s45, 3
    s_lshl_b32 s19, s44, 2
    s_add_u32 s18, s18, s19
    v_add_u32 v58, s18, v58
    v_lshlrev_b32 v22, 2, v22
    v_xor_b32 v58, v58, v22
    v_lshl_add_u32 v23, v58, 4, v23
    v_and_b32 v59, 1, v2
    v_lshl_add_u32 v23, v59, 3, v23
    v_add_u32 v14, 0x4000, v23
    v_xor_b32 v15, 64, v14
    """)
    for i in range(64, 128):
        a(f"v_mov_b32 v{i}, 0")
    F = lambda p: 24 + 16 * p
    xf = lambda p, m: F(p) + 4 * m
    wf = lambda p, n: F(p) + 8 + 4 * n
    acc = lambda n, m: 64 + (n * 2 + m) * 16

    def reads(lg, ks, p):
        r = []
        r.append((f"x{p}0", f"ds_read_b128 {vr(xf(p,0),4)}, v{6+ks}"))
        r.append((f"w{p}0", f"ds_read_b64_tr_b16 {vr(wf(p,0),2)}, v14 offset:{ks*4096}"))
        r.append((f"w{p}0", f"ds_read_b64_tr_b16 {vr(wf(p,0)+2,2)}, v14 offset:{ks*4096+1024}"))
        r.append((f"x{p}1", f"ds_read_b128 {vr(xf(p,1),4)}, v{10+ks}"))
        r.append((f"w{p}1", f"ds_read_b64_tr_b16 {vr(wf(p,1),2)}, v15 offset:{ks*4096}"))
        r.append((f"w{p}1", f"ds_read_b64_tr_b16 {vr(wf(p,1)+2,2)}, v15 offset:{ks*4096+1024}"))
        return r
    def dots(p):
        d = []
        for i in range(4):
            d.append(f"v_dot2_f32_bf16 v17, v{xf(p,0)+i}, v{xf(p,0)+i}, v17")
            d.append(f"v_dot2_f32_bf16 v16, v{xf(p,0)+i}, v19, v16")
            d.append(f"v_dot2_f32_bf16 v18, v{wf(p,0)+i}, v19, v18")
        return d
    def mf(n, m, p):
        return f"v_mfma_f32_32x32x16_bf16 {vr(acc(n,m),16)}, {vr(wf(p,n),4)}, {vr(xf(p,m),4)}, {vr(acc(n,m),16)}"
    def group(lg, p, nxt, mid=None):
        d = dots(p)
        nxt = list(nxt)
        lg.need(f"x{p}0", f"w{p}0")
        a(mf(0, 0, p))
        if mid:
            mid()
        for x in d[0:2]: a(x)
        for t, i in nxt[0:3]: lg.issue(t, i)
        lg.need(f"x{p}1")
        a(mf(0, 1, p))
        for x in d[2:4]: a(x)
        for t, i in nxt[3:6]: lg.issue(t, i)
        lg.need(f"w{p}1")
        a(mf(1, 0, p))
        for x in d[4:8]: a(x)
        a(mf(1, 1, p))
        for x in d[8:12]: a(x)

    a("s_waitcnt vmcnt(33)")
    a("s_barrier")
    lg = LG(a)
    for t, i in reads(lg, 0, 0): lg.issue(t, i)
    init = list(lg.q)
    a("s_mov_b32 s53, 0")
    a.label("K1_STAGE")
    group(lg, 0, reads(lg, 1, 1))
    group(lg, 1, reads(lg, 2, 0))
    group(lg, 0, reads(lg, 3, 1))
    a("s_cmp_eq_u32 s53, 7")
    a("s_cbranch_scc1 K1_LAST")
    qsave = list(lg.q)
    def mid():
        lg.drain()
        a("s_cmp_lt_u32 s53, 4")
        a("s_cbranch_scc1 K1_W24")
        a("s_cmp_eq_u32 s53, 4")
        a("s_cbranch_scc1 K1_W16")
        a("s_cmp_eq_u32 s53, 5")
        a("s_cbranch_scc1 K1_W8")
        a("s_waitcnt vmcnt(0)")
        a.label("K1_W8")
        a("s_waitcnt vmcnt(8)")
        a.label("K1_W16")
        a("s_waitcnt vmcnt(16)")
        a.label("K1_W24")
        a("s_waitcnt vmcnt(24)")
        a("s_barrier")
        a("s_cmp_gt_u32 s53, 2")
        a("s_cbranch_scc1 K1_NODMA")
        dma_block()
        a.label("K1_NODMA")
        a("s_mov_b32 s54, 32768")
        a("s_cmp_eq_u32 s53, 4")
        a("s_cselect_b32 s54, -131072, s54")
        for v in range(6, 16):
            a(f"v_add_u32 v{v}, s54, v{v}")
    group(lg, 1, reads(lg, 0, 0), mid)
    assert lg.q == init, (lg.q, init)
    a("s_add_u32 s53, s53, 1")
    a("s_branch K1_STAGE")
    a.label("K1_LAST")
    lg.q = qsave
    group(lg, 1, [])
    a("s_nop 3")
    row_stats(a, 16, 17, 20, 21, 24, 25)
    colsum_split(a, 18, 57, 22, 23, 24, 25)
    a("""
    v_lshlrev_b32 v26, 3, v2
    s_lshl_b32 s18, s44, 1
    s_add_u32 s18, s18, s45
    s_lshl_b32 s18, s18, 9
    s_add_u32 s18, s18, 131072
    v_add_u32 v27, s18, v26
    s_lshl_b32 s19, s45, 1
    s_add_u32 s19, s19, s44
    s_lshl_b32 s19, s19, 9
    s_add_u32 s19, s19, 135168
    v_add_u32 v28, s19, v26
    ds_write_b64 v27, v[20:21]
    ds_write_b64 v28, v[22:23]
    v_xor_b32 v27, 512, v27
    v_xor_b32 v28, 512, v28
    s_waitcnt lgkmcnt(0)
    s_barrier
    ds_read_b64 v[30:31], v27
    ds_read_b64 v[36:37], v28
    """)
    xside_frag(a, 20, 21, 40, 24, True)
    a("v_mov_b32 v32, v22")
    a("v_mov_b32 v33, v23")
    for v in (34, 35, 38, 39):
        a(f"v_mov_b32 v{v}, 0")
    a("s_waitcnt lgkmcnt(0)")
    xside_frag(a, 30, 31, 44, 24, True)
    a("s_nop 1")
    for n in range(2):
        for m in range(2):
            a(f"v_mfma_f32_32x32x16_bf16 {vr(acc(n,m),16)}, {vr(32+4*n,4)}, {vr(40+4*m,4)}, {vr(acc(n,m),16)}")
    a("v_rcp_f32 v48, v21")
    a("v_rcp_f32 v50, v31")
    a("s_cmp_lt_u32 s21, 4")
    a("s_cbranch_scc1 K1_EPI_Q")
    for m, (r, s) in enumerate(((48, 21), (50, 31))):
        A, B, S = 52 + 2 * m, 56 + 2 * m, 60 + 2 * m
        a(f"v_mul_f32 v{B}, {f2u(K0)}, v{r}")
        a(f"v_mul_f32 v{A}, v{r}, v{r}")
        a(f"v_mul_f32 v{A}, v{A}, v{r}")
        a(f"v_mul_f32 v{A}, {f2u(K1C)}, v{A}")
        a(f"v_mov_b32 v{S}, v{s}")
    a("""
    v_lshlrev_b32 v26, 4, v2
    s_lshl_b32 s18, s20, 2
    s_lshl_b32 s19, s44, 1
    s_add_u32 s18, s18, s19
    s_mul_i32 s18, s18, 86
    s_lshl_b32 s19, s58, 3
    s_add_u32 s18, s18, s19
    s_lshl_b32 s19, s45, 2
    s_add_u32 s18, s18, s19
    s_lshl_b32 s18, s18, 10
    """)
    a(f"s_add_u32 s18, s18, {H_OFF}")
    a("s_mul_i32 s19, s45, %d" % (86 * 1024))
    a("s_xor_b32 s22, s45, 1")
    a("s_mul_i32 s22, s22, %d" % (86 * 1024))
    a("s_lshl_b32 s59, s44, 11")
    a("s_xor_b32 s60, s59, 2048")
    a("s_add_u32 s61, s18, s19")
    a("s_add_u32 s62, s18, s22")
    a("s_add_u32 s63, s61, s59")
    a("s_add_u32 s64, s62, s59")
    a("s_add_u32 s65, s61, s60")
    a("s_add_u32 s66, s62, s60")
    a("s_cmp_eq_u32 s21, 14")
    a("s_cselect_b32 s19, s45, 0")
    a("s_and_b32 s22, s19, s44")
    a("s_andn2_b32 s19, s19, s44")
    a("s_lshl_b32 s22, s22, 28")
    a("s_lshl_b32 s19, s19, 28")
    a("s_add_u32 s63, s63, s22")
    a("s_add_u32 s64, s64, s22")
    a("s_add_u32 s65, s65, s19")
    a("s_add_u32 s66, s66, s19")
    a("s_nop 4")
    T = 128
    for n in range(2):
        for m in range(2):
            A, B, S = 52 + 2 * m, 56 + 2 * m, 60 + 2 * m
            c = acc(n, m)
            o = 160 + (n * 2 + m) * 8
            for b in range(2):
                prs = [c + 8 * b + 2 * i for i in range(4)]
                tt = [T + 2 * i for i in range(4)]
                for p, t in zip(prs, tt):
                    a(f"v_pk_mul_f32 {vr(t,2)}, {vr(p,2)}, {vr(p,2)}")
                for p, t in zip(prs, tt):
                    a(f"v_pk_fma_f32 {vr(t,2)}, {vr(t,2)}, {vr(A,2)}, {vr(B,2)} op_sel_hi:[1,0,0]")
                for p, t in zip(prs, tt):
                    a(f"v_pk_mul_f32 {vr(t,2)}, {vr(t,2)}, {vr(p,2)}")
                for p, t in zip(prs, tt):
                    a(f"v_exp_f32 v{t}, v{t}")
                    a(f"v_exp_f32 v{t+1}, v{t+1}")
                for p, t in zip(prs, tt):
                    a(f"v_pk_fma_f32 {vr(t,2)}, {vr(t,2)}, {vr(S,2)}, {vr(S,2)} op_sel_hi:[1,0,0]")
                for p, t in zip(prs, tt):
                    a(f"v_rcp_f32 v{t}, v{t}")
                    a(f"v_rcp_f32 v{t+1}, v{t+1}")
                for p, t in zip(prs, tt):
                    a(f"v_pk_mul_f32 {vr(t,2)}, {vr(t,2)}, {vr(p,2)}")
                for i, t in enumerate(tt):
                    a(f"v_cvt_pk_bf16_f32 v{o+4*b+i}, v{t}, v{t+1}")
                a(f"buffer_store_dwordx4 {vr(o+4*b,4)}, v26, s[32:35], s{63+n*2+m} offen offset:{b*1024}")
    a("s_endpgm")
    a.label("K1_EPI_Q")
    a(f"v_mul_f32 v48, {f2u(QS)}, v48")
    a(f"v_mul_f32 v50, {f2u(QS)}, v50")
    a("""
    v_and_b32 v26, 31, v2
    v_lshlrev_b32 v26, 10, v26
    v_lshrrev_b32 v27, 5, v2
    v_lshl_add_u32 v26, v27, 4, v26
    s_lshl_b32 s18, s20, 17
    s_lshl_b32 s19, s44, 16
    s_add_u32 s18, s18, s19
    s_add_u32 s18, s18, s47
    s_lshl_b32 s19, s45, 7
    s_add_u32 s18, s18, s19
    s_lshl_b32 s19, s45, 15
    s_xor_b32 s22, s19, 32768
    s_lshl_b32 s59, s44, 6
    s_xor_b32 s60, s59, 64
    s_add_u32 s61, s18, s19
    s_add_u32 s62, s18, s22
    s_add_u32 s63, s61, s59
    s_add_u32 s64, s62, s59
    s_add_u32 s65, s61, s60
    s_add_u32 s66, s62, s60
    s_nop 4
    """)
    assert Q_OFF == 0
    for n in range(2):
        for m in range(2):
            c = acc(n, m)
            o = 160 + (n * 2 + m) * 8
            r = 48 + 2 * m
            for i in range(8):
                a(f"v_pk_mul_f32 {vr(c+2*i,2)}, {vr(c+2*i,2)}, {vr(r,2)} op_sel_hi:[1,0]")
            for i in range(8):
                a(f"v_cvt_pk_bf16_f32 v{o+i}, v{c+2*i}, v{c+2*i+1}")
            a(f"buffer_store_dwordx4 {vr(o,4)}, v26, s[32:35], s{63+n*2+m} offen")
            a(f"buffer_store_dwordx4 {vr(o+4,4)}, v26, s[32:35], s{63+n*2+m} offen offset:32")
    a("s_endpgm")

    a.label("K1_KV")
    srd(a, 28, 8, 16384)
    srd(a, 40, 10, 16384)
    a("""
    v_lshlrev_b32 v5, 4, v2
    s_add_u32 m0, s50, 131072
    s_nop 0
    """)
    for q in range(4):
        a(f"buffer_load_dwordx4 v5, s[28:31], s50 offen offset:{q*1024} lds")
    a("s_add_u32 m0, s50, 147456")
    a("s_nop 0")
    for q in range(4):
        a(f"buffer_load_dwordx4 v5, s[40:43], s50 offen offset:{q*1024} lds")
    a("s_mov_b32 s53, 0")
    a.label("K1_KV_PRE")
    a("s_mov_b32 m0, s50")
    a("s_mov_b32 s55, s48")
    for q in range(4):
        a(f"buffer_load_dwordx4 v{3 + (q & 1)}, s[24:27], s55 offen offset:{q*1024} lds")
        if q < 3:
            a("s_add_u32 s55, s55, 7168")
    a("s_add_u32 s48, s48, 128")
    a("s_add_u32 s50, s50, 16384")
    a("s_add_u32 s53, s53, 1")
    a("s_cmp_lt_u32 s53, 8")
    a("s_cbranch_scc1 K1_KV_PRE")
    a("""
    v_and_b32 v20, 31, v2
    v_lshrrev_b32 v21, 5, v2
    v_bfe_u32 v22, v2, 1, 3
    v_xor_b32 v22, v22, v21
    v_lshlrev_b32 v22, 4, v22
    v_lshl_add_u32 v22, v20, 7, v22
    s_lshl_b32 s18, s23, 12
    v_add_u32 v6, s18, v22
    v_xor_b32 v7, 32, v6
    v_xor_b32 v8, 64, v6
    v_xor_b32 v9, 96, v6
    v_bfe_u32 v22, v2, 2, 2
    v_lshl_add_u32 v23, v21, 3, v22
    v_lshlrev_b32 v23, 5, v23
    v_bfe_u32 v58, v2, 4, 1
    v_lshl_add_u32 v23, v58, 14, v23
    v_and_b32 v59, 3, v2
    v_lshl_add_u32 v23, v59, 3, v23
    v_add_u32 v14, 0x20000, v23
    """)
    for i in range(64, 96):
        a(f"v_mov_b32 v{i}, 0")
    a("s_mov_b32 s53, 0")
    a("s_waitcnt vmcnt(16)")
    a("s_barrier")
    a.label("K1_KV_STAGE")
    for ks in range(4):
        a(f"ds_read_b128 {vr(24+8*ks,4)}, v{6+ks}")
        a(f"ds_read_b64_tr_b16 {vr(28+8*ks,2)}, v14 offset:{ks*512}")
        a(f"ds_read_b64_tr_b16 {vr(30+8*ks,2)}, v14 offset:{ks*512+128}")
    for ks in range(4):
        x, w = 24 + 8 * ks, 28 + 8 * ks
        a(f"s_waitcnt lgkmcnt({9-3*ks})")
        a(f"v_mfma_f32_32x32x16_bf16 {vr(64,16)}, {vr(w,4)}, {vr(x,4)}, {vr(64,16)}")
        for i in range(4):
            a(f"v_dot2_f32_bf16 v17, v{x+i}, v{x+i}, v17")
            a(f"v_dot2_f32_bf16 v16, v{x+i}, v19, v16")
            if i == 1:
                a(f"v_mfma_f32_32x32x16_bf16 {vr(80,16)}, {vr(x,4)}, {vr(w,4)}, {vr(80,16)}")
            a(f"v_dot2_f32_bf16 v18, v{w+i}, v19, v18")
    for v in range(6, 10):
        a(f"v_add_u32 v{v}, 0x4000, v{v}")
    a("v_add_u32 v14, 0x800, v14")
    a("s_add_u32 s53, s53, 1")
    a("s_cmp_eq_u32 s53, 4")
    a("s_cbranch_scc0 K1_KV_NOW")
    a("s_waitcnt vmcnt(0)")
    a("s_barrier")
    a.label("K1_KV_NOW")
    a("s_cmp_lt_u32 s53, 8")
    a("s_cbranch_scc1 K1_KV_STAGE")
    row_stats(a, 16, 17, 20, 21, 24, 25)
    colsum_split(a, 18, None, 32, 33, 24, 25)
    xside_frag(a, 20, 21, 40, 24, False)
    a("v_mov_b32 v34, 0")
    a("v_mov_b32 v35, 0")
    a("v_rcp_f32 v48, v21")
    a("""
    v_and_b32 v26, 31, v2
    v_lshlrev_b32 v26, 2, v26
    v_add_u32 v26, s18, v26
    v_lshrrev_b32 v27, 5, v2
    v_lshlrev_b32 v27, 4, v27
    v_add_u32 v27, s18, v27
    ds_write_b32 v26, v48
    """)
    a(f"v_mfma_f32_32x32x16_bf16 {vr(64,16)}, {vr(32,4)}, {vr(40,4)}, {vr(64,16)}")
    a(f"v_mfma_f32_32x32x16_bf16 {vr(80,16)}, {vr(40,4)}, {vr(32,4)}, {vr(80,16)}")
    a("s_waitcnt lgkmcnt(0)")
    for g in range(4):
        a(f"ds_read_b128 {vr(96+4*g,4)}, v27 offset:{g*32}")
    a("s_lshl_b32 s19, s20, 2")
    a("s_add_u32 s19, s19, s23")
    a(f"s_mul_i32 s22, s19, {KV_REC}")
    a(f"s_add_u32 s22, s22, {KV_OFF}")
    a("""
    v_and_b32 v28, 19, v2
    v_bfe_u32 v29, v2, 2, 1
    v_lshl_or_b32 v28, v29, 3, v28
    v_bfe_u32 v29, v2, 3, 1
    v_lshl_or_b32 v28, v29, 2, v28
    v_lshlrev_b32 v28, 4, v28
    v_lshrrev_b32 v29, 5, v2
    v_lshl_add_u32 v28, v29, 9, v28
    """)
    a("""
    v_and_b32 v30, 15, v2
    v_lshlrev_b32 v30, 4, v30
    v_lshl_add_u32 v30, v29, 8, v30
    v_add_u32 v30, 0x400, v30
    v_bfe_u32 v31, v2, 4, 1
    v_xor_b32 v31, 1, v31
    v_lshl_add_u32 v30, v31, 28, v30
    s_nop 3
    """)
    for i in range(4):
        a(f"v_pk_mul_f32 {vr(64+2*i,2)}, {vr(64+2*i,2)}, {vr(48,2)} op_sel_hi:[1,0]")
    for i in range(4):
        a(f"v_cvt_pk_bf16_f32 v{52+i}, v{64+2*i}, v{65+2*i}")
    a(f"buffer_store_dwordx4 {vr(52,4)}, v28, s[32:35], s22 offen")
    a("v_mov_b32 v56, 0")
    for i in range(4):
        a(f"v_dot2_f32_bf16 v56, v{52+i}, v{52+i}, v56")
    a("s_nop 2")
    a("v_mov_b32 v57, v56")
    a("s_nop 1")
    a("v_permlane32_swap_b32 v56, v57")
    a("s_nop 1")
    a("v_add_f32 v56, v56, v57")
    a("s_waitcnt lgkmcnt(0)")
    for i in range(8):
        a(f"v_pk_mul_f32 {vr(80+2*i,2)}, {vr(80+2*i,2)}, {vr(96+2*i,2)}")
    for i in range(8):
        a(f"v_cvt_pk_bf16_f32 v{112+i}, v{80+2*i}, v{81+2*i}")
    a(f"buffer_store_dwordx4 {vr(112,4)}, v30, s[32:35], s22 offen")
    a(f"buffer_store_dwordx4 {vr(116,4)}, v30, s[32:35], s22 offen offset:512")
    a("v_readlane_b32 s60, v56, 0")
    for l in range(1, 32):
        a(f"v_readlane_b32 s61, v56, {l}")
        a("s_max_u32 s60, s60, s61")
    a("v_mov_b32 v58, s60")
    a("s_lshl_b32 s19, s19, 2")
    a(f"s_add_u32 s19, s19, {KN_OFF}")
    a("v_lshlrev_b32 v59, 28, v2")
    for v in (60, 61, 62, 63):
        a(f"v_mov_b32 v{v}, v19")
    a("buffer_store_dword v58, v59, s[32:35], s19 offen")
    a("buffer_store_dwordx4 v[60:63], v59, s[32:35], s22 offen offset:2048")
    a.label("K1_END")
    a("s_endpgm")
    a.raw(kdesc(name, 192, 80))
    return a.text()
```

```python
from common import *
from k1 import f2u

def gen_k2():
    a = Asm()
    name = "k2_kernel"
    a.raw(khead(name))
    Q, K, V0, V1, C, S, O = 4, 12, 16, 20, 24, (40, 56), 72
    a("""
    s_cmp_ge_u32 s2, 256
    s_cbranch_scc1 K2_END
    s_load_dwordx2 s[4:5], s[0:1], 96
    v_lshrrev_b32 v1, 6, v0
    v_and_b32 v2, 63, v0
    v_readfirstlane_b32 s12, v1
    v_lshlrev_b32 v3, 4, v2
    s_and_b32 s14, s2, 7
    s_lshl_b32 s14, s14, 5
    s_lshr_b32 s15, s2, 3
    s_add_u32 s14, s14, s15
    s_lshl_b32 s13, s14, 3
    s_add_u32 s13, s13, s12
    v_and_b32 v88, 31, v2
    v_lshrrev_b32 v89, 5, v2
    v_lshlrev_b32 v90, 5, v88
    v_lshl_add_u32 v90, v89, 4, v90
    s_lshl_b32 s14, s13, 10
    s_lshl_b32 s80, s12, 11
    s_waitcnt lgkmcnt(0)
    """)
    srd(a, 8, 4, WS_USED)
    a(f"s_add_u32 s6, s4, {KN_OFF}")
    a("s_addc_u32 s7, s5, 0")
    a(f"buffer_load_dwordx4 {vr(Q,4)}, v90, s[8:11], s14 offen")
    a(f"s_add_u32 s81, s80, {KV_OFF}")
    a("s_mov_b32 s82, 0")
    a.label("K2_DMA")
    a("s_mov_b32 m0, s80")
    a("s_add_u32 s82, s82, 1")
    a("buffer_load_dwordx4 v3, s[8:11], s81 offen lds")
    a("buffer_load_dwordx4 v3, s[8:11], s81 offen offset:1024 lds")
    a("s_add_u32 s80, s80, 16384")
    a("s_add_u32 s81, s81, 16384")
    a("s_cmp_lt_u32 s82, 8")
    a("s_cbranch_scc1 K2_DMA")
    a("s_cmp_eq_u32 s12, 0")
    a("s_cselect_b32 s82, 0, 16384")
    a("s_sub_u32 s80, s80, s82")
    a("s_sub_u32 s81, s81, s82")
    a("s_mov_b32 m0, s80")
    for i in range(4):
        a(f"s_load_dwordx16 {sr(16+16*i,16)}, s[6:7], {64*i}")
    a("buffer_load_dwordx4 v3, s[8:11], s81 offen lds")
    a("""
    v_mov_b32 v8, v3
    v_lshlrev_b32 v9, 4, v88
    v_lshl_add_u32 v9, v89, 8, v9
    v_add_u32 v9, 0x400, v9
    v_add_u32 v10, 0x200, v9
    v_mov_b32 v91, 0x800
    v_cmp_gt_u32 vcc, 16, v88
    v_mov_b32 v11, 0xdddddddd
    s_nop 0
    v_cndmask_b32 v9, v91, v9, vcc
    v_cndmask_b32 v10, v91, v10, vcc
    """)
    a("v_lshlrev_b32 v92, 10, v88")
    a("v_lshl_add_u32 v92, v89, 9, v92")
    a("s_lshr_b32 s14, s13, 5")
    a("s_lshl_b32 s14, s14, 15")
    a("s_and_b32 s15, s13, 31")
    a("s_lshl_b32 s15, s15, 4")
    a("s_add_u32 s83, s14, s15")
    a(f"s_add_u32 s83, s83, {O_OFF}")
    a("s_waitcnt lgkmcnt(0)")
    for i in range(17, 80):
        a(f"s_max_u32 s16, s16, s{i}")
    a("s_waitcnt vmcnt(17)")
    a("v_mov_b32 v93, 0")
    for i in range(4):
        a(f"v_dot2_f32_bf16 v93, v{Q+i}, v{Q+i}, v93")
    a("s_nop 2")
    a("v_mov_b32 v94, v93")
    a("s_nop 1")
    a("v_permlane32_swap_b32 v93, v94")
    a("s_nop 1")
    a("v_add_f32 v93, v93, v94")
    a("v_mul_f32 v93, s16, v93")
    a("v_sqrt_f32 v93, v93")
    a("s_nop 0")
    a(f"v_mul_f32 v{C}, {f2u(-1.001)}, v93")
    for i in range(1, 16):
        a(f"v_mov_b32 v{C+i}, v{C}")
    a("s_mov_b32 s84, 1")
    a("s_mov_b32 s85, 4")
    a("s_waitcnt vmcnt(15)")
    a("s_barrier")
    a.label("K2_PASS")
    a(f"ds_read_b128 {vr(K,4)}, v8")
    for i in range(16):
        a(f"v_mov_b32 v{O+i}, 0")
    for i in range(4):
        a(f"v_mov_b32 v{V1+i}, 0")
    for i in range(8, 16):
        a(f"v_mov_b32 v{S[1]+i}, 0")
    a("s_mov_b32 s82, 0")
    a("s_waitcnt lgkmcnt(0)")
    a(f"v_mfma_f32_32x32x16_bf16 {vr(S[0],16)}, {vr(K,4)}, {vr(Q,4)}, {vr(C,16)}")
    a(f"ds_read_b128 {vr(K,4)}, v8 offset:{KV_REC}")
    a(f"ds_read_b128 {vr(V0,4)}, v9")
    a("s_nop 7")
    a.raw(".p2align 6")
    a.label("K2_LOOP")
    a("s_cmp_eq_u32 s82, s84")
    a("s_cbranch_scc1 K2_SYNCA")
    a("s_cmp_eq_u32 s82, s85")
    a("s_cbranch_scc1 K2_SYNCB")
    a.label("K2_BODY")
    U = 4
    for u in range(U):
        cur, oth = S[u & 1], S[1 - (u & 1)]
        E = lambda i: a(f"v_exp_f32 v{cur+i}, v{cur+i}")
        E(0); E(1)
        a("s_waitcnt lgkmcnt(2)")
        a(f"v_smfmac_f32_32x32x32_bf16 {vr(O,16)}, {vr(V1,4)}, {vr(oth+8,8)}, v11")
        a(f"ds_read_b128 {vr(V1,4)}, v10 offset:{u*KV_REC}")
        for i in range(2, 7): E(i)
        a("s_waitcnt lgkmcnt(2)")
        a(f"v_mfma_f32_32x32x16_bf16 {vr(oth,16)}, {vr(K,4)}, {vr(Q,4)}, {vr(C,16)}")
        a(f"ds_read_b128 {vr(K,4)}, v8 offset:{(u+2)*KV_REC}")
        for i in range(7, 12): E(i)
        a("s_waitcnt lgkmcnt(2)")
        a(f"v_smfmac_f32_32x32x32_bf16 {vr(O,16)}, {vr(V0,4)}, {vr(cur,8)}, v11")
        a(f"ds_read_b128 {vr(V0,4)}, v9 offset:{(u+1)*KV_REC}")
        for i in range(12, 16): E(i)
        if u == U - 1:
            pass
    a(f"v_add_u32 v8, {U*KV_REC}, v8")
    a(f"v_add_u32 v9, {U*KV_REC}, v9")
    a(f"v_add_u32 v10, {U*KV_REC}, v10")
    a("s_add_u32 s82, s82, 1")
    a(f"s_cmp_lt_u32 s82, {64//U}")
    a("s_cbranch_scc1 K2_LOOP")
    a("s_waitcnt lgkmcnt(2)")
    a(f"v_smfmac_f32_32x32x32_bf16 {vr(O,16)}, {vr(V1,4)}, {vr(S[1]+8,8)}, v11")
    a(f"v_subrev_u32 v8, {64*KV_REC}, v8")
    a(f"v_subrev_u32 v9, {64*KV_REC}, v9")
    a(f"v_subrev_u32 v10, {64*KV_REC}, v10")
    a("s_waitcnt lgkmcnt(0)")
    a("s_cmp_lg_u32 s84, 1")
    a("s_nop 7")
    a("s_cbranch_scc1 K2_STORE")
    a(f"v_min3_f32 v93, |v{O}|, |v{O+1}|, |v{O+2}|")
    a(f"v_min3_f32 v93, v93, |v{O+3}|, |v{O+4}|")
    a(f"v_min3_f32 v93, v93, |v{O+5}|, |v{O+6}|")
    a(f"v_min_f32 v93, v93, |v{O+7}|")
    a("v_mov_b32 v94, 0x12800000")
    a("v_mov_b32 v95, 0x21800000")
    a("v_cmp_nge_f32 s[86:87], v93, v94")
    a(f"v_cmp_nge_f32 vcc, v{O+8}, v95")
    a("s_nop 1")
    a("s_or_b64 s[86:87], s[86:87], vcc")
    a("s_cmp_lg_u64 s[86:87], 0")
    a("s_cbranch_scc1 K2_FALLBACK")
    a.label("K2_STORE")
    a(f"v_rcp_f32 v94, v{O+8}")
    a("s_nop 0")
    for i in range(4):
        a(f"v_pk_mul_f32 {vr(O+2*i,2)}, {vr(O+2*i,2)}, v[94:95] op_sel_hi:[1,0]")
    for i in range(4):
        a(f"v_cvt_pk_bf16_f32 v{96+i}, v{O+2*i}, v{O+2*i+1}")
    a("buffer_store_dwordx4 v[96:99], v92, s[8:11], s83 offen")
    a.label("K2_END")
    a("s_endpgm")
    a.label("K2_SYNCA")
    a("s_waitcnt vmcnt(11)")
    a("s_barrier")
    a("s_branch K2_BODY")
    a.label("K2_SYNCB")
    a("s_waitcnt vmcnt(0)")
    a("s_barrier")
    a("s_branch K2_BODY")
    a.label("K2_FALLBACK")
    a("v_mov_b32 v93, 0xff800000")
    a("v_mov_b32 v96, v8")
    a("s_mov_b32 s82, 0")
    a.label("K2_FB_LOOP")
    a(f"ds_read_b128 {vr(K,4)}, v96")
    a(f"v_add_u32 v96, {KV_REC}, v96")
    a("s_waitcnt lgkmcnt(0)")
    a(f"v_mfma_f32_32x32x16_bf16 {vr(S[0],16)}, {vr(K,4)}, {vr(Q,4)}, 0")
    a("s_nop 15")
    for i in range(8):
        a(f"v_max3_f32 v93, v93, v{S[0]+2*i}, v{S[0]+2*i+1}")
    a("s_add_u32 s82, s82, 1")
    a("s_cmp_lt_u32 s82, 64")
    a("s_cbranch_scc1 K2_FB_LOOP")
    a("v_mov_b32 v94, v93")
    a("s_nop 1")
    a("v_permlane32_swap_b32 v93, v94")
    a("s_nop 1")
    a("v_max_f32 v93, v93, v94")
    a(f"v_sub_f32 v{C}, 0, v93")
    for i in range(1, 16):
        a(f"v_mov_b32 v{C+i}, v{C}")
    a("s_mov_b32 s84, -1")
    a("s_mov_b32 s85, -1")
    a("s_branch K2_PASS")
    a.raw(kdesc(name, 104, 96))
    return a.text()
```

```python
from common import *

def gen_k3():
    a = Asm()
    name = "k3_kernel"
    a.raw(khead(name))
    NJ = 15
    ACC = 0x40
    AF = 128
    BF = 24
    acc = lambda n, m: ACC + (n * 2 + m) * 16
    a("""
    s_cmp_ge_u32 s2, 256
    s_cbranch_scc1 K3_END
    s_load_dwordx2 s[4:5], s[0:1], 0
    s_load_dwordx2 s[6:7], s[0:1], 32
    s_load_dwordx4 s[8:11], s[0:1], 64
    s_load_dwordx2 s[12:13], s[0:1], 80
    s_load_dwordx2 s[14:15], s[0:1], 96
    v_lshrrev_b32 v1, 6, v0
    v_and_b32 v2, 63, v0
    v_readfirstlane_b32 s16, v1
    s_and_b32 s17, s2, 7
    s_lshr_b32 s18, s2, 3
    s_lshr_b32 s19, s17, 1
    s_lshl_b32 s19, s19, 3
    s_and_b32 s20, s18, 7
    s_add_u32 s19, s19, s20
    s_and_b32 s20, s17, 1
    s_lshl_b32 s20, s20, 2
    s_lshr_b32 s21, s18, 3
    s_add_u32 s20, s20, s21
    v_lshlrev_b32 v3, 4, v2
    v_lshrrev_b32 v5, 3, v2
    v_lshlrev_b32 v5, 10, v5
    v_bfe_u32 v6, v2, 4, 1
    v_lshlrev_b32 v6, 2, v6
    v_and_b32 v7, 7, v2
    v_xor_b32 v6, v6, v7
    v_lshl_add_u32 v4, v6, 4, v5
    s_mul_i32 s22, s16, 20480
    s_waitcnt lgkmcnt(0)
    """)
    srd(a, 24, 14, WS_USED)
    srd(a, 28, 6, 512 * 1024)
    srd(a, 32, 8, 1376 * 1024)
    srd(a, 36, 4, 2048 * 1024)
    srd(a, 40, 10, 1024)
    srd(a, 44, 12, 2048 * 1024)
    a("s_lshl_b32 s48, s19, 6")
    a("s_add_u32 s48, s48, s16")
    a("s_lshl_b32 s48, s48, 10")
    a(f"s_add_u32 s48, s48, {O_OFF}")
    a("s_mul_i32 s49, s19, 172")
    a("s_add_u32 s49, s49, s16")
    a("s_lshl_b32 s49, s49, 10")
    a(f"s_add_u32 s49, s49, {H_OFF}")
    a("s_lshl_b32 s50, s16, 14")
    a("s_lshl_b32 s21, s20, 7")
    a("s_add_u32 s50, s50, s21")
    a("s_cmp_ge_u32 s16, 6")
    a("s_cselect_b32 s51, 0x10000000, 0")
    def issue(j):
        slot = j % 10
        if j < 4:
            bs, jj, ab, astep = 28, j, 48, 32768
        else:
            bs, jj, ab, astep = 32, j - 4, 49, 86 * 1024
        a(f"s_add_u32 m0, s22, {slot*2048}")
        a(f"s_add_u32 s52, s50, {jj*131072}")
        a(f"buffer_load_dwordx4 v4, {sr(bs,4)}, s52 offen lds")
        a(f"s_add_u32 s52, s52, 7168")
        a(f"buffer_load_dwordx4 v4, {sr(bs,4)}, s52 offen offset:1024 lds")
        a(f"s_add_u32 s52, s{ab}, {jj*8192}")
        if j == 14:
            a("s_add_u32 s52, s52, s51")
        a(f"buffer_load_dwordx4 {vr(AF+8*j,4)}, v3, s[24:27], s52 offen")
        a(f"s_add_u32 s52, s52, {astep}")
        a(f"buffer_load_dwordx4 {vr(AF+8*j+4,4)}, v3, s[24:27], s52 offen")
    for j in range(10):
        issue(j)
    a("""
    v_lshrrev_b32 v8, 3, v0
    v_and_b32 v9, 7, v0
    v_lshlrev_b32 v10, 10, v8
    v_lshl_add_u32 v10, v9, 4, v10
    s_lshl_b32 s53, s19, 16
    s_add_u32 s53, s53, s21
    v_lshlrev_b32 v11, 4, v9
    buffer_load_dwordx4 v[12:15], v10, s[36:39], s53 offen
    buffer_load_dwordx4 v[16:19], v11, s[40:43], s21 offen
    """)
    a("""
    v_lshrrev_b32 v20, 5, v2
    v_bfe_u32 v21, v2, 2, 2
    v_lshl_add_u32 v20, v20, 2, v21
    v_lshlrev_b32 v20, 7, v20
    v_bfe_u32 v22, v2, 4, 1
    v_bfe_u32 v23, v2, 1, 1
    v_lshl_add_u32 v22, v22, 1, v23
    v_bfe_u32 v23, v2, 3, 1
    v_lshl_add_u32 v22, v23, 2, v22
    v_lshl_add_u32 v20, v22, 4, v20
    v_and_b32 v23, 1, v2
    v_lshl_add_u32 v20, v23, 3, v20
    v_add_u32 v20, s22, v20
    v_xor_b32 v21, 64, v20
    """)
    for i in range(64, 128):
        a(f"v_mov_b32 v{i}, 0")
    def younger(j):
        if j <= 4:
            return 4 * (9 - j) + 2 + 4 * j
        if j <= 9:
            return 4 * (9 - j) + 2 + 20
        return 4 * (14 - j)
    def treads(j):
        p = BF + 8 * (j & 1)
        slot = j % 10
        a(f"ds_read_b64_tr_b16 {vr(p,2)}, v20 offset:{slot*2048}")
        a(f"ds_read_b64_tr_b16 {vr(p+2,2)}, v20 offset:{slot*2048+1024}")
        a(f"ds_read_b64_tr_b16 {vr(p+4,2)}, v21 offset:{slot*2048}")
        a(f"ds_read_b64_tr_b16 {vr(p+6,2)}, v21 offset:{slot*2048+1024}")
    for j in range(NJ):
        p = BF + 8 * (j & 1)
        a(f"s_waitcnt vmcnt({younger(j)})")
        treads(j)
        a("s_waitcnt lgkmcnt(0)")
        for n in range(2):
            for m in range(2):
                a(f"v_mfma_f32_32x32x16_bf16 {vr(acc(n,m),16)}, {vr(p+4*n,4)}, {vr(AF+8*j+4*m,4)}, {vr(acc(n,m),16)}")
            if n == 0 and j < 5:
                issue(j + 10)
    a("""
    v_and_b32 v20, 31, v2
    v_lshrrev_b32 v21, 5, v2
    v_and_b32 v22, 15, v2
    v_xor_b32 v21, v21, v22
    v_lshlrev_b32 v21, 4, v21
    v_lshl_add_u32 v20, v20, 8, v21
    s_lshl_b32 s52, s16, 14
    v_add_u32 v20, s52, v20
    s_barrier
    """)
    for n in range(2):
        for g in range(4):
            x = (n * 8 + 2 * g) << 4
            a(f"v_xor_b32 v21, {x}, v20")
            if n == 0 and g == 0:
                a("s_nop 7")
            for m in range(2):
                a(f"ds_write_b128 v21, {vr(acc(n,m)+4*g,4)} offset:{m*8192}")
    a("""
    v_and_b32 v22, 15, v8
    v_lshlrev_b32 v23, 1, v9
    v_xor_b32 v22, v22, v23
    v_lshlrev_b32 v22, 4, v22
    v_lshl_add_u32 v22, v8, 8, v22
    v_xor_b32 v23, 16, v22
    v_add_u32 v24, 0x10000, v22
    v_add_u32 v25, 0x10000, v23
    s_waitcnt lgkmcnt(0)
    s_barrier
    """)
    for p in range(8):
        b0, b1 = (22, 23) if p < 4 else (24, 25)
        a(f"ds_read_b128 {vr(64+8*p,4)}, v{b0} offset:{(p&3)*16384}")
        a(f"ds_read_b128 {vr(68+8*p,4)}, v{b1} offset:{(p&3)*16384}")
    for i in range(4):
        a(f"v_lshlrev_b32 v{40+2*i}, 16, v{12+i}")
        a(f"v_and_b32 v{41+2*i}, 0xffff0000, v{12+i}")
        a(f"v_lshlrev_b32 v{48+2*i}, 16, v{16+i}")
        a(f"v_and_b32 v{49+2*i}, 0xffff0000, v{16+i}")
    for i in range(4):
        a(f"v_pk_add_f32 {vr(40+2*i,2)}, {vr(40+2*i,2)}, {vr(48+2*i,2)}")
    for p in range(8):
        a(f"s_waitcnt lgkmcnt({14-2*p})")
        for i in range(4):
            a(f"v_pk_add_f32 {vr(40+2*i,2)}, {vr(40+2*i,2)}, {vr(64+8*p+2*i,2)}")
    for i in range(4):
        a(f"v_cvt_pk_bf16_f32 v{48+i}, v{40+2*i}, v{41+2*i}")
    a("buffer_store_dwordx4 v[48:51], v10, s[44:47], s53 offen")
    a.label("K3_END")
    a("s_endpgm")
    a.raw(kdesc(name, 248, 64))
    return a.text()
```

```python
import sys
from common import *
import k1, k2, k3
HDR = open('parallel_sum__grouped_kv_mqa__dense_activation_gelu__prompt.s.ref').read().split("; Override launch")[0]
def build(path):
    s = HDR
    s += "; @launch kernel=k1_kernel grid=(256,1,1) block=(256,1,1) lds=163840\n"
    s += "; @launch kernel=k2_kernel grid=(256,1,1) block=(512,1,1) lds=136320\n"
    s += "; @launch kernel=k3_kernel grid=(256,1,1) block=(512,1,1) lds=163840\n"
    s += '.amdgcn_target "amdgcn-amd-amdhsa--gfx950"\n'
    s += k1.gen_k1() + k2.gen_k2() + k3.gen_k3()
    open(path, "w").write(s)
if __name__ == "__main__":
    build(sys.argv[1] if len(sys.argv) > 1 else "parallel_sum__grouped_kv_mqa__dense_activation_gelu__prompt.s")
```

```python
import sys, subprocess
def make(name, body, iters=200, vgpr=128, pre=""):
    s = f""".amdgcn_target "amdgcn-amd-amdhsa--gfx950"
.text
.globl {name}
.p2align 8
.type {name},@function
{name}:
    s_load_dwordx2 s[4:5], s[0:1], 0
    s_load_dwordx2 s[6:7], s[0:1], 8
    v_lshrrev_b32 v1, 6, v0
    s_nop 1
    v_readfirstlane_b32 s20, v1
    v_and_b32 v2, 63, v0
    v_cvt_f32_u32 v3, v2
    v_mul_f32 v3, 0.001, v3
"""
    for i in range(4, vgpr):
        s += f"    v_mov_b32 v{i}, v3\n"
    s += pre
    s += f"""
    s_waitcnt lgkmcnt(0)
    s_mov_b32 s8, s6
    s_mov_b32 s9, s7
    s_mov_b32 s10, 0x4000000
    s_mov_b32 s11, 0x00020000
    s_mov_b32 s12, s4
    s_mov_b32 s13, s5
    s_mov_b32 s14, 0x4000000
    s_mov_b32 s15, 0x00020000
    s_barrier
    s_memrealtime s[26:27]
    s_memtime s[22:23]
    s_waitcnt lgkmcnt(0)
    s_mov_b32 s21, {iters}
.p2align 6
L_loop:
"""
    s += "\n".join("    "+b for b in body) + "\n"
    s += f"""
    s_sub_u32 s21, s21, 1
    s_cmp_lg_u32 s21, 0
    s_cbranch_scc1 L_loop
    s_nop 15
    s_memtime s[24:25]
    s_memrealtime s[28:29]
    s_waitcnt lgkmcnt(0)
    s_sub_u32 s24, s24, s22
    s_sub_u32 s28, s28, s26
    s_mul_i32 s30, s2, NWAVES
    s_add_u32 s30, s30, s20
    s_lshl_b32 s30, s30, 3
    v_mov_b32 v4, s24
    v_mov_b32 v5, s28
    v_mov_b32 v6, s30
    v_cmp_eq_u32 vcc, 0, v2
    s_and_saveexec_b64 s[32:33], vcc
    buffer_store_dwordx2 v[4:5], v6, s[8:11], 0 offen
    s_waitcnt vmcnt(0)
    s_endpgm
.section .rodata,"a"
.p2align 6
.amdhsa_kernel {name}
  .amdhsa_next_free_vgpr {vgpr}
  .amdhsa_next_free_sgpr 64
  .amdhsa_accum_offset {vgpr}
  .amdhsa_group_segment_fixed_size 0
  .amdhsa_kernarg_size 16
  .amdhsa_user_sgpr_count 2
  .amdhsa_user_sgpr_kernarg_segment_ptr 1
  .amdhsa_system_sgpr_workgroup_id_x 1
.end_amdhsa_kernel
.amdgpu_metadata
---
amdhsa.version: [1, 2]
amdhsa.kernels:
  - .name: {name}
    .symbol: {name}.kd
    .kernarg_segment_size: 16
    .kernarg_segment_align: 8
    .group_segment_fixed_size: 0
    .private_segment_fixed_size: 0
    .wavefront_size: 64
    .sgpr_count: 64
    .vgpr_count: {vgpr}
    .max_flat_workgroup_size: 1024
    .args:
      - {{.name: pin, .size: 8, .offset: 0, .value_kind: global_buffer, .address_space: global}}
      - {{.name: pout, .size: 8, .offset: 8, .value_kind: global_buffer, .address_space: global}}
...
.end_amdgpu_metadata
"""
    return s
def build(name, body, nwaves, **kw):
    s = make(name, body, **kw).replace("NWAVES", str(nwaves))
    fn = f"{name}_w{nwaves}"
    open(fn+".s","w").write(s)
    subprocess.check_call(["clang","-x","assembler","-target","amdgcn-amd-amdhsa","-mcpu=gfx950",fn+".s","-o",fn+".co"])
    return fn
```

```python
from gen import *
tests = {}
S=(40,56); O=72; K=12; V0=16; V1=20; Q=4; C=24
def body(u, pv=True, qk=True, ex=True, dense=False):
    b=[]
    cur, oth = S[u&1], S[1-(u&1)]
    if qk: E=lambda i: b.append(f"v_exp_f32 v{cur+i}, v{cur+i}") if ex else None
    else: E=lambda i: b.append(f"v_exp_f32 v{cur+i}, v{96+i}")
    E(0);E(1)
    if pv: b.append(f"v_smfmac_f32_32x32x32_bf16 v[{O}:{O+15}], v[{V1}:{V1+3}], v[{oth+8}:{oth+15}], v11" if not dense else f"v_mfma_f32_32x32x16_bf16 v[{O}:{O+15}], v[{V1}:{V1+3}], v[{oth+8}:{oth+11}], v[{O}:{O+15}]")
    for i in range(2,6): E(i)
    if qk: b.append(f"v_mfma_f32_32x32x16_bf16 v[{oth}:{oth+15}], v[{K+ (u%2)*100}:{K+3+(u%2)*100}], v[{Q}:{Q+3}], v[{C}:{C+15}]")
    for i in range(6,11): E(i)
    if pv: b.append(f"v_smfmac_f32_32x32x32_bf16 v[{O}:{O+15}], v[{V0}:{V0+3}], v[{cur}:{cur+7}], v11" if not dense else f"v_mfma_f32_32x32x16_bf16 v[{O}:{O+15}], v[{V0}:{V0+3}], v[{cur}:{cur+3}], v[{O}:{O+15}]")
    for i in range(11,16): E(i)
    return b
def full(**kw):
    b=[]
    for u in range(8): b+=body(u,**kw)
    return b
def pre(vmode):
    p="""    s_waitcnt lgkmcnt(0)
    s_mov_b32 s12, s4
    s_mov_b32 s13, s5
    s_mov_b32 s14, 0x4000000
    s_mov_b32 s15, 0x00020000
    v_mov_b32 v11, 0xdddddddd
    v_lshlrev_b32 v8, 4, v0
    buffer_load_dwordx4 v[4:7], v8, s[12:15], 0 offen
    v_add_u32 v8, 0x4000, v8
    buffer_load_dwordx4 v[12:15], v8, s[12:15], 0 offen
    v_add_u32 v8, 0x4000, v8
    buffer_load_dwordx4 v[112:115], v8, s[12:15], 0 offen
    v_add_u32 v8, 0x4000, v8
    buffer_load_dwordx4 v[16:19], v8, s[12:15], 0 offen
    v_add_u32 v8, 0x4000, v8
    buffer_load_dwordx4 v[20:23], v8, s[12:15], 0 offen
    v_add_u32 v8, 0x4000, v8
    buffer_load_dwordx4 v[96:99], v8, s[12:15], 0 offen
    v_add_u32 v8, 0x4000, v8
    buffer_load_dwordx4 v[100:103], v8, s[12:15], 0 offen
    v_add_u32 v8, 0x4000, v8
    buffer_load_dwordx4 v[104:107], v8, s[12:15], 0 offen
    v_add_u32 v8, 0x4000, v8
    buffer_load_dwordx4 v[108:111], v8, s[12:15], 0 offen
    s_waitcnt vmcnt(0)
"""
    for i in range(16): p+=f"    v_mov_b32 v{24+i}, -4.0\n    v_mov_b32 v{72+i}, 0\n"
    if vmode!="rand":
        p+="    v_and_b32 v9, 31, v0\n    v_cmp_gt_u32 vcc, 16, v9\n"
        p+="    v_mov_b32 v10, %s\n    s_nop 1\n" % ("0" if vmode=="zero" else "0x3f803f80")
        for i in range(16,24): p+=f"    v_cndmask_b32 v{i}, v10, v{i}, vcc\n"
    return p
cfg={"p_full_zero":(dict(),"zero"),"p_full_ones":(dict(),"ones"),"p_full_rand":(dict(),"rand"),"p_nopv":(dict(pv=False),"zero"),"p_exponly":(dict(pv=False,qk=False),"zero"),"p_noexp":(dict(ex=False),"zero"),"p_dense":(dict(dense=True),"zero"),"p_pvonly":(dict(qk=False),"zero")}
cmds=[]
for n,(kw,vm) in cfg.items():
    b=full(**kw)
    for w,it in ((8,8),(8,125)):
        fn=build(n+f"_{it}",b,w,iters=it,pre=pre(vm))
        cmds.append(f"echo {n} iters={it} waves/WG={w} instrs={len(b)//8}; ./host {fn}.co {n}_{it} 256 {w*64} 100000 5 | tail -2")
open("run8.sh","w").write("cd mb\n"+"\n".join(cmds)+"\n")
```

```python
from gen import *
tests = {}
b=[]
for i in range(8):
    b.append(f"v_exp_f32 v{16+i}, v{40+i}")
    b.append(f"v_exp_f16 v{60+i}, v{80+i}")
tests["mixh"]=b
b=[]
for i in range(8):
    b.append(f"v_exp_f32 v{16+i}, v{40+i}")
    b.append(f"v_cvt_f32_f16 v{60+i}, v{80+i}")
tests["mixcvt"]=b
b=[]
for i in range(8):
    b.append(f"v_exp_f32 v{16+i}, v{40+i}")
    b.append(f"v_pk_mul_f32 v[{60+2*i}:{61+2*i}], v[80:81], v[82:83]")
tests["mixpk"]=b
b=[]
for i in range(8):
    b.append(f"v_exp_f32 v{16+i}, v{40+i}")
    b.append(f"v_dot2_f32_bf16 v{60+i}, v80, v81, v{60+i}")
tests["mixdot"]=b
b=[]
for i in range(8):
    b.append(f"v_exp_f32 v{16+i}, v{40+i}")
    b.append(f"v_mfma_f32_4x4x4_16b_f16 v[{60+4*i}:{63+4*i}], v[100:101], v[102:103], v[{60+4*i}:{63+4*i}]")
tests["mixmf4"]=b
cmds=[]
for n,b in tests.items():
    for w in (4,8,16):
        fn=build(n,b*8,w,iters=125)
        cmds.append(f"echo {n} waves/WG={w} instrs={len(b)}; ./host {fn}.co {n} 256 {w*64} 100000 3 | tail -1")
open("run9.sh","w").write("cd mb\n"+"\n".join(cmds)+"\n")
```
